```python
import torch

def _softmax(x, axis=-1):
    return torch.softmax(x, dim=axis)
def _gelu(x):
    return torch.nn.functional.gelu(x, approximate="tanh")
def _silu(x):
    return torch.nn.functional.silu(x)
def _sigmoid(x):
    return torch.sigmoid(x)
def _layernorm(x, axis=-1, eps=1e-5):
    m = x.mean(dim=axis, keepdim=True)
    v = x.var(dim=axis, keepdim=True, unbiased=False)
    return (x - m) / torch.sqrt(v + eps)
def _scatter_add(tgt, idx, src, axis=0):
    return tgt.clone().index_add_(axis, idx, src)
def _segment_sum(src, seg, n):
    out = torch.zeros((n,) + src.shape[1:], dtype=src.dtype)
    return out.index_add_(0, seg, src)
def _pad(x, pw):
    flat = tuple(v for pair in reversed(pw) for v in pair)
    return torch.nn.functional.pad(x, flat)

kernel_name = 'standalone__gqa_softmax__near_ridge'

def setup_inputs():

    _w = (lambda a: (lambda t: t.to(torch.bfloat16) if t.is_floating_point() else t)(torch.as_tensor(a)))
    B, Hq, Hkv, Sq, Sk, D = 16, 16, 8, 192, 512, 256
    return {
        "q": _w((lambda *s: torch.randn(*s, dtype=torch.bfloat16) * 0.8)(B, Hq, Sq, D)),
        "k": _w((lambda *s: torch.randn(*s, dtype=torch.bfloat16) * 0.8)(B, Hkv, Sk, D)),
        "v": _w((lambda *s: torch.randn(*s, dtype=torch.bfloat16) * 0.05)(B, Hkv, Sk, D)),
    }

def reference(q, k, v):
    B, Hq, Sq, D = q.shape
    Hkv = k.shape[1]
    rep = Hq // Hkv
    k = (lambda x, n, axis: torch.repeat_interleave(x, n, dim=axis))(k, rep, axis=1)
    v = (lambda x, n, axis: torch.repeat_interleave(x, n, dim=axis))(v, rep, axis=1)
    scale = D ** -0.5
    scores = torch.einsum("bhqd,bhkd->bhqk", q, k) * scale
    p = _softmax(scores, axis=-1)
    return torch.einsum("bhqk,bhkd->bhqd", p, v)
```

```python
import sys, shutil
import numpy as np
sys.path.insert(0, 'mb')
from hiprt import *
def kern(name, nch, ci, touch, dpre, mid=False):
    s = """
  s_load_dwordx2 s[4:5], s[0:1], 0
  s_getpc_b64 s[30:31]
  s_memtime s[40:41]
  v_lshrrev_b32 v3, 6, v0
  v_lshlrev_b32 v6, 4, v0
  s_waitcnt lgkmcnt(0)
  s_mov_b32 s8, s4
  s_mov_b32 s9, s5
  s_mov_b32 s10, 0x1000000
  s_mov_b32 s11, 0x20000
  v_readfirstlane_b32 s16, v3
"""
    if dpre:
        s += "  s_mov_b32 s32, s30\n  s_and_b32 s33, s31, 0xffff\n  s_mov_b32 s34, %d\n  s_mov_b32 s35, 0x20000\n" % (36 * 1024)
        for i in range(9):
            s += "  s_mov_b32 s36, %d\n  buffer_load_dwordx4 v[8:11], v6, s[32:35], s36 offen\n" % (i * 4096)
        s += "  s_waitcnt vmcnt(0)\n"
    if mid:
        s += "  s_mov_b64 vcc, -1\n  s_branch L_%s_m0\nL_%s_back:\n  s_mov_b64 vcc, 0\n" % (name, name)
    if touch:
        s += "  s_branch L_%s_t0\nL_%s_back:\n" % (name, name)
    s += "  s_memtime s[20:21]\n  s_waitcnt lgkmcnt(0)\n"
    for c in range(nch):
        if touch and c % 4 == 0:
            k = c // 4
            s += "  s_branch L_%s_s%d\n  .p2align 12\nL_%s_t%d:\n" % (name, k, name, k)
            nxt = "L_%s_t%d" % (name, k + 1) if c + 4 < nch else "L_%s_back" % name
            s += "  s_branch %s\nL_%s_s%d:\n" % (nxt, name, k)
        if mid and c % 4 == 2:
            k = c // 4
            nxt = "L_%s_m%d" % (name, k + 1) if c + 4 < nch else "L_%s_back" % name
            s += "L_%s_m%d:\n  s_cbranch_vccnz %s\n" % (name, k, nxt)
        for i in range(ci):
            s += "  v_mfma_f32_16x16x32_bf16 a[%d:%d], v[16:19], v[20:23], a[%d:%d]\n" % (4*(i%8), 4*(i%8)+3, 4*(i%8), 4*(i%8)+3)
            s += "  v_add_f32 v30, v31, v32\n  v_fma_f32 v33, v31, v32, v34\n"
        s += "  s_memtime s[22:23]\n  s_waitcnt lgkmcnt(0)\n  s_sub_u32 s24, s22, s20\n  v_writelane_b32 v40, s24, %d\n" % c
    s += """
  s_sub_u32 s24, s20, s40
  v_writelane_b32 v40, s24, 40
  s_lshl_b32 s25, s2, 2
  s_add_u32 s25, s25, s16
  s_lshl_b32 s25, s25, 8
  v_and_b32 v5, 63, v0
  v_lshlrev_b32 v5, 2, v5
  v_add_u32 v5, s25, v5
  buffer_store_dword v40, v5, s[8:11], 0 offen
  s_endpgm
"""
    return s
nch = 32; ci = 48
variants = [('plain', False, False, False), ('mid', False, False, True), ('middpre', False, True, True), ('touch', True, False, False)]
for vn, t, d, md in variants:
    k = [dict(name='k0', body=kern('k0', nch, ci, t, d, md), vgpr=512, accum=256)]
    open('t8_%s.s' % vn.replace('+', '_'), 'w').write(wrap(k, 2))
    assemble('t8_%s.s' % vn.replace('+', '_'), 't8_%s.co' % vn.replace('+', '_'))
if len(sys.argv) > 1 and sys.argv[1] == 'asm': sys.exit(0)
out = Buf(0x1000000); big = Buf(1 << 30)
keep = []
for trial in range(3):
  for vn, t, d, md in variants:
    src = 't8_%s.co' % vn.replace('+', '_')
    dst = 't8_copy_%s_%d.co' % (vn.replace('+', '_'), trial)
    shutil.copy(src, dst)
    m = Module(dst); keep.append(m)
    f = m.func('k0')
    big.memset(trial); sync()
    for rep in range(2):
        out.memset(0); sync()
        launch(f, (256, 1, 1), (256, 1, 1), [out.ptr, big.ptr], lds=65536)
        sync()
        rr = out.download(np.uint32, 256 * 4 * 64).reshape(256, 4, 64).astype(np.int64)
        r = rr[:, :, :nch]; pre = rr[:, :, 40]
        dd = np.diff(np.concatenate([np.zeros((256, 4, 1), np.int64), r], axis=2), axis=2)
        print("%-11s trial %d rep %d pre med %d max %d total med %d max %d | per-chunk med: %s" % (vn, trial, rep, np.median(pre), pre.max(), np.median(r[:, :, -1]), r[:, :, -1].max(), ' '.join(str(int(x)) for x in np.median(dd.reshape(-1, nch), axis=0))))
```
